```python
import torch

def _softmax(x, axis=-1):
    return torch.softmax(x, dim=axis)
def _gelu(x):
    return torch.nn.functional.gelu(x, approximate="tanh")
def _silu(x):
    return torch.nn.functional.silu(x)
def _sigmoid(x):
    return torch.sigmoid(x)
def _layernorm(x, axis=-1, eps=1e-5):
    m = x.mean(dim=axis, keepdim=True)
    v = x.var(dim=axis, keepdim=True, unbiased=False)
    return (x - m) / torch.sqrt(v + eps)
def _scatter_add(tgt, idx, src, axis=0):
    return tgt.clone().index_add_(axis, idx, src)
def _segment_sum(src, seg, n):
    out = torch.zeros((n,) + src.shape[1:], dtype=src.dtype)
    return out.index_add_(0, seg, src)
def _pad(x, pw):
    flat = tuple(v for pair in reversed(pw) for v in pair)
    return torch.nn.functional.pad(x, flat)

kernel_name = 'sequential_preLN__spectral_gfnet__geglu_ffn__prompt'

def setup_inputs():

    _w = (lambda a: (lambda t: t.to(torch.bfloat16) if t.is_floating_point() else t)(torch.as_tensor(a)))
    def _A_setup():
        B, S, D = 1, 2048, 512
        Df = D // 2 + 1
        return {
            "x": _w((lambda *s: torch.randn(*s, dtype=torch.bfloat16) * 0.05)(B, S, D)),
            "w_r": _w((lambda *s: torch.randn(*s, dtype=torch.bfloat16) * 0.4)(S, Df) * 0.02),
            "w_i": _w((lambda *s: torch.randn(*s, dtype=torch.bfloat16) * 0.4)(S, Df) * 0.02),
        }
    _A_in = _A_setup()

    def _B_setup():
        B, S, D, F = 1, 2048, 512, 1376
        return {
            "x": _w((lambda *s: torch.randn(*s, dtype=torch.bfloat16) * 0.05)(B, S, D)),
            "w_gate": _w((lambda *s: torch.randn(*s, dtype=torch.bfloat16) * 0.05)(D, F)),
            "w_up": _w((lambda *s: torch.randn(*s, dtype=torch.bfloat16) * 0.05)(D, F)),
            "w_down": _w((lambda *s: torch.randn(*s, dtype=torch.bfloat16) * 0.05)(F, D)),
        }
    _B_in = _B_setup()

    return {
        "A_x": _A_in["x"],
        "A_w_r": _A_in["w_r"],
        "A_w_i": _A_in["w_i"],
        "B_x": _B_in["x"],
        "B_w_gate": _B_in["w_gate"],
        "B_w_up": _B_in["w_up"],
        "B_w_down": _B_in["w_down"],
    }

def reference(A_x, A_w_r, A_w_i, B_x, B_w_gate, B_w_up, B_w_down):
    def _A_ref(x, w_r, w_i):
        B, S, D = x.shape
        X = (lambda x, axes=(-2,-1): torch.fft.rfft2(x.float(), dim=axes))(x, axes=(-2, -1))
        W = w_r + 1j * w_i
        X = X * W
        y = (lambda x, s, axes=(-2,-1): torch.fft.irfft2(x, s=s, dim=axes).to(torch.bfloat16))(X, (S, D), axes=(-2, -1))
        return y

    def _B_ref(x, w_gate, w_up, w_down):
        return (_gelu(x @ w_gate) * (x @ w_up)) @ w_down

    x = A_x
    h = x + _A_ref(_layernorm(x, axis=-1), A_w_r, A_w_i)
    h2 = h + _B_ref(_layernorm(h, axis=-1), B_w_gate, B_w_up, B_w_down)
    return h2
```

```python
class Asm:
    def __init__(self):
        self.lines = []

    def __call__(self, s):
        import re
        for l in s.strip("\n").split("\n"):
            m = re.match(r"\s*(buffer_.*s\[\d+:\d+\], )(\S+)( offen.*?)offset:(\d+)(.*)", l)
            if m and int(m.group(4)) > 4095:
                o = int(m.group(4))
                self.lines.append(f"    s_add_u32 s99, {m.group(2)}, {o & ~4095}")
                l = f"{m.group(1)}s99{m.group(3)}offset:{o & 4095}{m.group(5)}"
            self.lines.append("    " + l.strip() if not l.strip().endswith(":") else l.strip())

    def label(self, s):
        self.lines.append(s + ":")

    def raw(self, s):
        self.lines.append(s)

    def text(self):
        return "\n".join(self.lines) + "\n"


class Pairs:
    def __init__(self, lo, hi):
        self.free_list = list(range(lo, hi, 2))
        self.maxused = lo

    def get(self):
        r = self.free_list.pop(0)
        self.maxused = max(self.maxused, r + 2)
        return r

    def put(self, *rs):
        for r in rs:
            assert r not in self.free_list
            self.free_list.append(r)
        self.free_list.sort()


def vp(r):
    return f"v[{r}:{r+1}]"


class Cx:
    def __init__(self, a: Asm, pool: Pairs, s_half):
        self.a = a
        self.p = pool
        self.s_half = s_half

    def add(self, x, y):
        d = self.p.get()
        self.a(f"v_pk_add_f32 {vp(d)}, {vp(x)}, {vp(y)}")
        return d

    def sub(self, x, y):
        d = self.p.get()
        self.a(f"v_pk_add_f32 {vp(d)}, {vp(x)}, {vp(y)} neg_lo:[0,1] neg_hi:[0,1]")
        return d

    def add_rot(self, x, y, sgn):
        d = self.p.get()
        if sgn < 0:
            self.a(f"v_pk_add_f32 {vp(d)}, {vp(x)}, {vp(y)} op_sel:[0,1] op_sel_hi:[1,0] neg_hi:[0,1]")
        else:
            self.a(f"v_pk_add_f32 {vp(d)}, {vp(x)}, {vp(y)} op_sel:[0,1] op_sel_hi:[1,0] neg_lo:[0,1]")
        return d

    def sub_rot(self, x, y, sgn):
        return self.add_rot(x, y, -sgn)

    def rot8(self, x, sgn):
        t = self.p.get()
        if sgn < 0:
            self.a(f"v_pk_add_f32 {vp(t)}, {vp(x)}, {vp(x)} op_sel:[0,1] op_sel_hi:[1,0] neg_hi:[0,1]")
        else:
            self.a(f"v_pk_add_f32 {vp(t)}, {vp(x)}, {vp(x)} op_sel:[0,1] op_sel_hi:[1,0] neg_lo:[0,1]")
        self.a(f"v_pk_mul_f32 {vp(t)}, {vp(t)}, s[{self.s_half}:{self.s_half+1}]")
        return t

    def rot83(self, x, sgn):
        t = self.p.get()
        if sgn < 0:
            self.a(f"v_pk_add_f32 {vp(t)}, {vp(x)}, {vp(x)} op_sel:[1,0] op_sel_hi:[0,1] neg_lo:[0,1] neg_hi:[1,1]")
        else:
            self.a(f"v_pk_add_f32 {vp(t)}, {vp(x)}, {vp(x)} op_sel:[0,1] op_sel_hi:[0,1] neg_lo:[1,1] neg_hi:[0,1]")
        self.a(f"v_pk_mul_f32 {vp(t)}, {vp(t)}, s[{self.s_half}:{self.s_half+1}]")
        return t

    def mul(self, x, w, conj=False):
        t = self.p.get()
        if not conj:
            self.a(f"v_pk_mul_f32 {vp(t)}, {vp(x)}, {vp(w)} op_sel:[0,0] op_sel_hi:[0,1]")
            self.a(f"v_pk_fma_f32 {vp(t)}, {vp(x)}, {vp(w)}, {vp(t)} op_sel:[1,1,0] op_sel_hi:[1,0,1] neg_lo:[1,0,0]")
        else:
            self.a(f"v_pk_mul_f32 {vp(t)}, {vp(x)}, {vp(w)} op_sel:[0,0] op_sel_hi:[0,1] neg_hi:[0,1]")
            self.a(f"v_pk_fma_f32 {vp(t)}, {vp(x)}, {vp(w)}, {vp(t)} op_sel:[1,1,0] op_sel_hi:[1,0,1]")
        return t

    def fft4(self, x, sgn):
        c0 = self.add(x[0], x[2])
        c1 = self.add(x[1], x[3])
        d0 = self.sub(x[0], x[2])
        d1 = self.sub(x[1], x[3])
        self.p.put(*x)
        y0 = self.add(c0, c1)
        y2 = self.sub(c0, c1)
        y1 = self.add_rot(d0, d1, sgn)
        y3 = self.sub_rot(d0, d1, sgn)
        self.p.put(c0, c1, d0, d1)
        return [y0, y1, y2, y3]

    def fft8(self, x, sgn):
        a = [self.add(x[i], x[i + 4]) for i in range(4)]
        b = [self.sub(x[i], x[i + 4]) for i in range(4)]
        self.p.put(*x)
        b1 = self.rot8(b[1], sgn)
        b3 = self.rot83(b[3], sgn)
        self.p.put(b[1], b[3])
        c0 = self.add(a[0], a[2])
        c1 = self.add(a[1], a[3])
        d0 = self.sub(a[0], a[2])
        d1 = self.sub(a[1], a[3])
        self.p.put(*a)
        y0 = self.add(c0, c1)
        y4 = self.sub(c0, c1)
        y2 = self.add_rot(d0, d1, sgn)
        y6 = self.sub_rot(d0, d1, sgn)
        self.p.put(c0, c1, d0, d1)
        e0 = self.add_rot(b[0], b[2], sgn)
        f0 = self.sub_rot(b[0], b[2], sgn)
        e1 = self.add(b1, b3)
        f1 = self.sub(b1, b3)
        self.p.put(b[0], b[2], b1, b3)
        y1 = self.add(e0, e1)
        y5 = self.sub(e0, e1)
        y3 = self.add_rot(f0, f1, sgn)
        y7 = self.sub_rot(f0, f1, sgn)
        self.p.put(e0, f0, e1, f1)
        return [y0, y1, y2, y3, y4, y5, y6, y7]

    def twiddles(self, vfrac, n, tmp):
        out = []
        for k in range(1, n + 1):
            w = self.p.get()
            self.a(f"v_mul_f32 v{tmp}, {float(k)}, v{vfrac}")
            self.a(f"v_cos_f32 v{w}, v{tmp}")
            self.a(f"v_sin_f32 v{w+1}, -v{tmp}")
            out.append(w)
        self.a("s_nop 0")
        return out
```

```python
from common import Asm, Pairs, Cx, vp
from layout import *


def srd(a, dst, lo, hi, nbytes):
    a(f"s_mov_b32 s{dst}, s{lo}")
    a(f"s_and_b32 s{dst+1}, s{hi}, 0xffff")
    a(f"s_mov_b32 s{dst+2}, {nbytes}")
    a(f"s_mov_b32 s{dst+3}, 0x00020000")


def wave_sum(a, regs, vperm_addrs, tmp):
    for i in range(6):
        for j, r in enumerate(regs):
            a(f"ds_bpermute_b32 v{tmp+j}, v{vperm_addrs+i}, v{r}")
        a("s_waitcnt lgkmcnt(0)")
        for j, r in enumerate(regs):
            a(f"v_add_f32 v{r}, v{r}, v{tmp+j}")


def rbf_pair(a, x, y, t):
    a(f"v_cvt_pk_bf16_f32 v{t}, v{x}, v{y}")
    a(f"v_lshlrev_b32 v{x}, 16, v{t}")
    a(f"v_and_b32 v{y}, 0xffff0000, v{t}")


def layernorm_rows(a, vals, stat, perm, tmp):
    n = len(vals)
    for r, v in enumerate(vals):
        s = stat + r
        a(f"v_add_f32 v{s}, v{v[0]}, v{v[1]}")
        for i in range(2, 8):
            a(f"v_add_f32 v{s}, v{s}, v{v[i]}")
    wave_sum(a, [stat + r for r in range(n)], perm, tmp)
    for r in range(n):
        a(f"v_mul_f32 v{stat+r}, 0x3b000000, v{stat+r}")
    for r, v in enumerate(vals):
        s = stat + n + r
        for i in range(8):
            a(f"v_sub_f32 v{tmp}, v{v[i]}, v{stat+r}")
            if i == 0:
                a(f"v_mul_f32 v{s}, v{tmp}, v{tmp}")
            else:
                a(f"v_fmac_f32 v{s}, v{tmp}, v{tmp}")
    wave_sum(a, [stat + n + r for r in range(n)], perm, tmp)
    for r in range(n):
        m, s = stat + r, stat + n + r
        a(f"v_mul_f32 v{s}, 0x3b000000, v{s}")
        rbf_pair(a, m, s, tmp)
        a(f"v_add_f32 v{s}, 0x3727c5ac, v{s}")
        a(f"v_cvt_pk_bf16_f32 v{tmp}, v{s}, v{s}")
        a(f"v_lshlrev_b32 v{s}, 16, v{tmp}")
        a(f"v_sqrt_f32 v{s}, v{s}")
        a("s_nop 0")
        a(f"v_cvt_pk_bf16_f32 v{tmp}, v{s}, v{s}")
        a(f"v_lshlrev_b32 v{s}, 16, v{tmp}")
        a(f"v_rcp_f32 v{s}, v{s}")
        a("s_nop 0")
    for r, v in enumerate(vals):
        m, s = stat + r, stat + n + r
        for i in range(0, 8, 2):
            a(f"v_sub_f32 v{v[i]}, v{v[i]}, v{m}")
            a(f"v_sub_f32 v{v[i+1]}, v{v[i+1]}, v{m}")
            rbf_pair(a, v[i], v[i + 1], tmp)
            a(f"v_mul_f32 v{v[i]}, v{v[i]}, v{s}")
            a(f"v_mul_f32 v{v[i+1]}, v{v[i+1]}, v{s}")
            rbf_pair(a, v[i], v[i + 1], tmp)


def make_perm_addrs(a, vlane, base):
    for i in range(6):
        a(f"v_xor_b32 v{base+i}, {1<<i}, v{vlane}")
        a(f"v_lshlrev_b32 v{base+i}, 2, v{base+i}")


def fft512_wave(a, cx, pool, x, sgn, vlane, vA1w, vA1r, vA2w, vA2r, vfr1, vfr2, tmp):
    y = cx.fft8(x, sgn)
    tw = cx.twiddles(vfr1, 7, tmp)
    z = [y[0]]
    for k in range(1, 8):
        z.append(cx.mul(y[k], tw[k - 1], conj=(sgn > 0)))
        pool.put(y[k])
    pool.put(*tw)
    for k in range(8):
        a(f"ds_write_b64 v{vA1w}, {vp(z[k])} offset:{k*576}")
    pool.put(*z)
    a("s_waitcnt lgkmcnt(0)")
    x = [pool.get() for _ in range(8)]
    for n1 in range(8):
        a(f"ds_read_b64 {vp(x[n1])}, v{vA1r} offset:{n1*64}")
    a("s_waitcnt lgkmcnt(0)")
    y = cx.fft8(x, sgn)
    tw = cx.twiddles(vfr2, 7, tmp)
    z = [y[0]]
    for k in range(1, 8):
        z.append(cx.mul(y[k], tw[k - 1], conj=(sgn > 0)))
        pool.put(y[k])
    pool.put(*tw)
    for k in range(8):
        a(f"ds_write_b64 v{vA2w}, {vp(z[k])} offset:{k*72}")
    pool.put(*z)
    a("s_waitcnt lgkmcnt(0)")
    x = [pool.get() for _ in range(8)]
    for n0 in range(8):
        a(f"ds_read_b64 {vp(x[n0])}, v{vA2r} offset:{n0*8}")
    a("s_waitcnt lgkmcnt(0)")
    return cx.fft8(x, sgn)


def fft512_addr_setup(a, vlane, vbase, regs, tmp):
    vA1w, vA1r, vA2w, vA2r, vfr1, vfr2 = regs
    a(f"v_lshlrev_b32 v{vA1w}, 3, v{vlane}")
    a(f"v_add_u32 v{vA1w}, v{vA1w}, v{vbase}")
    a(f"v_lshrrev_b32 v{tmp}, 3, v{vlane}")
    a(f"v_mul_u32_u24 v{tmp}, 576, v{tmp}")
    a(f"v_add_u32 v{tmp}, v{tmp}, v{vbase}")
    a(f"v_and_b32 v{tmp+1}, 7, v{vlane}")
    a(f"v_lshlrev_b32 v{tmp+2}, 3, v{tmp+1}")
    a(f"v_add_u32 v{vA1r}, v{tmp}, v{tmp+2}")
    a(f"v_mov_b32 v{vA2w}, v{vA1r}")
    a(f"v_mul_u32_u24 v{tmp+2}, 72, v{tmp+1}")
    a(f"v_add_u32 v{vA2r}, v{tmp}, v{tmp+2}")
    a(f"v_cvt_f32_u32 v{vfr1}, v{vlane}")
    a(f"v_mul_f32 v{vfr1}, 0x3b000000, v{vfr1}")
    a(f"v_cvt_f32_u32 v{vfr2}, v{tmp+1}")
    a(f"v_mul_f32 v{vfr2}, 0x3c800000, v{vfr2}")


def gen_k1(name):
    a = Asm()
    a.label(name)
    a("s_load_dwordx4 s[4:7], s[0:1], 0      ; x, w_r")
    a("s_load_dwordx2 s[8:9], s[0:1], 16     ; w_i")
    a("s_load_dwordx4 s[12:15], s[0:1], 32")
    a("s_load_dwordx2 s[16:17], s[0:1], 48   ; w_down")
    a("s_load_dwordx2 s[10:11], s[0:1], 72   ; ws")
    a("s_mov_b32 s20, 0x3f3504f3")
    a("s_mov_b32 s21, 0x3f3504f3")
    a(f"s_cmp_ge_u32 s2, {K1_WGS}")
    a(f"s_cbranch_scc1 {name}_end")
    a("s_waitcnt lgkmcnt(0)")
    srd(a, 24, 10, 11, WS_BYTES)
    a(f"s_cmp_ge_u32 s2, {K1_FFT_WGS}")
    a(f"s_cbranch_scc1 {name}_side")
    srd(a, 28, 4, 5, S * D * 2)
    vlane, vbase, vperm, tmp, stat = 1, 2, 4, 10, 14
    regs = (20, 21, 22, 23, 24, 25)
    a("v_and_b32 v1, 63, v0")
    a("v_lshrrev_b32 v3, 6, v0            ; wave")
    a("v_mul_u32_u24 v2, 4608, v3")
    a("s_lshl_b32 s3, s2, 13")
    a("v_lshlrev_b32 v26, 11, v3")
    a("v_lshl_add_u32 v26, v1, 4, v26")
    a("v_add_u32 v26, s3, v26")
    a("buffer_load_dwordx4 v[32:35], v26, s[28:31], 0 offen")
    a("buffer_load_dwordx4 v[36:39], v26, s[28:31], 0 offen offset:1024")
    make_perm_addrs(a, vlane, vperm)
    fft512_addr_setup(a, vlane, vbase, regs, tmp)
    a("s_waitcnt vmcnt(0)")
    ra = list(range(40, 48))
    rb = list(range(48, 56))
    for i in range(4):
        a(f"v_lshlrev_b32 v{ra[2*i]}, 16, v{32+i}")
        a(f"v_and_b32 v{ra[2*i+1]}, 0xffff0000, v{32+i}")
        a(f"v_lshlrev_b32 v{rb[2*i]}, 16, v{36+i}")
        a(f"v_and_b32 v{rb[2*i+1]}, 0xffff0000, v{36+i}")
    layernorm_rows(a, [ra, rb], stat, vperm, tmp)
    a("v_lshlrev_b32 v27, 6, v1")
    a("v_add_u32 v27, v27, v2")
    for i in range(0, 8, 2):
        a(f"v_mov_b32 v28, v{ra[i]}")
        a(f"v_mov_b32 v29, v{rb[i]}")
        a(f"v_mov_b32 v30, v{ra[i+1]}")
        a(f"v_mov_b32 v31, v{rb[i+1]}")
        a(f"ds_write_b128 v27, v[28:31] offset:{i*8}")
    a("s_waitcnt lgkmcnt(0)")
    pool = Pairs(32, 120)
    cx = Cx(a, pool, 20)
    x = [pool.get() for _ in range(8)]
    for j in range(8):
        a(f"ds_read_b64 {vp(x[j])}, v{regs[0]} offset:{j*512}")
    a("s_waitcnt lgkmcnt(0)")
    y = fft512_wave(a, cx, pool, x, -1, vlane, *regs, tmp)
    a("v_lshrrev_b32 v27, 3, v1")
    a("v_and_b32 v28, 7, v1")
    a("v_lshl_add_u32 v27, v28, 3, v27      ; k0 + 8*k1")
    a("v_lshl_add_u32 v27, v27, 3, v2")
    for k2 in range(8):
        a(f"ds_write_b64 v27, {vp(y[k2])} offset:{k2*512}")
    pool.put(*y)
    a("s_waitcnt lgkmcnt(0)")
    a("v_sub_u32 v28, 512, v1")
    a("v_and_b32 v28, 511, v28")
    a("v_lshl_add_u32 v28, v28, 3, v2")
    zk = [pool.get() for _ in range(5)]
    zm = [pool.get() for _ in range(4)]
    for j in range(4):
        a(f"ds_read_b64 {vp(zk[j])}, v{regs[0]} offset:{j*512}")
        if j == 0:
            a(f"ds_read_b64 {vp(zm[j])}, v28")
        else:
            pass
    a("v_sub_u32 v29, 512, v1")
    a("v_lshl_add_u32 v29, v29, 3, v2")
    a("v_subrev_u32 v29, 2048, v29")
    for j in range(1, 4):
        a(f"ds_read_b64 {vp(zm[j])}, v29 offset:{(4-j)*512}")
    a(f"ds_read_b64 {vp(zk[4])}, v2 offset:2048   ; Z[256]")
    a("s_waitcnt lgkmcnt(0)")
    a("s_lshl_b32 s3, s2, 6")
    a("v_lshlrev_b32 v30, 4, v3")
    a("v_lshl_add_u32 v30, v1, 14, v30      ; + k*16384 (k=lane)")
    a("v_add_u32 v30, s3, v30")
    o = 100
    for j in range(4):
        a(f"v_add_f32 v{o}, v{zk[j]}, v{zm[j]}")
        a(f"v_sub_f32 v{o+1}, v{zk[j]+1}, v{zm[j]+1}")
        a(f"v_add_f32 v{o+2}, v{zk[j]+1}, v{zm[j]+1}")
        a(f"v_sub_f32 v{o+3}, v{zm[j]}, v{zk[j]}")
        a(f"s_mov_b32 s3, {j*64*16384}")
        a(f"buffer_store_dwordx4 v[{o}:{o+3}], v30, s[24:27], s3 offen")
        o += 4
    a(f"v_add_f32 v{o}, v{zk[4]}, v{zk[4]}")
    a(f"v_mov_b32 v{o+1}, 0")
    a(f"v_add_f32 v{o+2}, v{zk[4]+1}, v{zk[4]+1}")
    a(f"v_mov_b32 v{o+3}, 0")
    a("v_cmp_eq_u32 vcc, 0, v1")
    a("s_and_saveexec_b64 s[32:33], vcc")
    a(f"s_mov_b32 s3, {256*16384}")
    a(f"buffer_store_dwordx4 v[{o}:{o+3}], v30, s[24:27], s3 offen")
    a("s_mov_b64 exec, s[32:33]")
    a("s_endpgm")
    a.label(f"{name}_side")
    a(f"s_cmp_ge_u32 s2, {K1_FFT_WGS + K1_W_WGS}")
    a(f"s_cbranch_scc1 {name}_wts")
    srd(a, 28, 6, 7, S * DF * 2)
    srd(a, 32, 8, 9, S * DF * 2)
    a(f"s_sub_u32 s3, s2, {K1_FFT_WGS}")
    a("s_mul_i32 s36, s3, 16448")
    a("v_lshlrev_b32 v1, 4, v0")
    a("v_add_u32 v2, s36, v1")
    for i in range(4):
        a(f"buffer_load_dwordx4 v[{8+4*i}:{11+4*i}], v2, s[28:31], 0 offen offset:{i*4096}")
        a(f"buffer_load_dwordx4 v[{32+4*i}:{35+4*i}], v2, s[32:35], 0 offen offset:{i*4096}")
    a("v_add_u32 v3, 16384, v2")
    a("buffer_load_dwordx4 v[24:27], v3, s[28:31], 0 offen")
    a("buffer_load_dwordx4 v[48:51], v3, s[32:35], 0 offen")
    a("s_waitcnt vmcnt(0)")
    for i in range(4):
        a(f"ds_write_b128 v1, v[{8+4*i}:{11+4*i}] offset:{i*4096}")
        a(f"ds_write_b128 v1, v[{32+4*i}:{35+4*i}] offset:{16448+i*4096}")
    a("v_cmp_gt_u32 vcc, 4, v0")
    a("s_and_saveexec_b64 s[38:39], vcc")
    a("ds_write_b128 v1, v[24:27] offset:16384")
    a(f"ds_write_b128 v1, v[48:51] offset:{16448+16384}")
    a("s_mov_b64 exec, s[38:39]")
    a("s_waitcnt lgkmcnt(0)")
    a("s_barrier")
    a("v_and_b32 v4, 31, v0                 ; sl")
    a("v_lshrrev_b32 v5, 5, v0              ; col (0..7)")
    a("v_mul_u32_u24 v6, 514, v4")
    a("v_lshl_add_u32 v6, v5, 1, v6")
    a("s_lshl_b32 s37, s3, 7                ; s0*4")
    a("v_lshlrev_b32 v7, 13, v5             ; col*8192")
    a("v_lshl_add_u32 v7, v4, 2, v7")
    a("v_add_u32 v7, s37, v7")
    a(f"v_add_u32 v7, {WS_WT}, v7")
    for it in range(33):
        if it == 32:
            a("v_cmp_gt_u32 vcc, 32, v0")
            a("s_and_saveexec_b64 s[38:39], vcc")
        a(f"ds_read_u16 v{8+it}, v6 offset:{it*16}")
        a(f"ds_read_u16 v60, v6 offset:{16448+it*16}")
        a("s_waitcnt lgkmcnt(0)")
        a(f"v_lshl_or_b32 v{8+it}, v60, 16, v{8+it}")
        a(f"s_mov_b32 s40, {it*8*8192}")
        a(f"buffer_store_dword v{8+it}, v7, s[24:27], s40 offen")
    a("s_mov_b64 exec, s[38:39]")
    a("s_endpgm")
    a.label(f"{name}_wts")
    a(f"s_sub_u32 s3, s2, {K1_FFT_WGS + K1_W_WGS}")
    a("s_cmp_ge_u32 s3, 64")
    a(f"s_cbranch_scc1 {name}_wd")
    a("s_lshr_b32 s36, s3, 5                ; sel")
    a("s_and_b32 s37, s3, 31                ; ks16")
    a("s_cmp_eq_u32 s36, 0")
    a("s_cselect_b32 s38, s12, s14")
    a("s_cselect_b32 s39, s13, s15")
    srd(a, 28, 38, 39, D * F * 2)
    a("s_mul_i32 s40, s37, 44032")
    a("v_lshlrev_b32 v1, 4, v0")
    a("v_add_u32 v2, s40, v1")
    for i in range(11):
        a(f"buffer_load_dwordx4 v[{8+4*i}:{11+4*i}], v2, s[28:31], 0 offen offset:{i*4096}")
    a("s_waitcnt vmcnt(0)")
    for i in range(10):
        a(f"ds_write_b128 v1, v[{8+4*i}:{11+4*i}] offset:{i*4096}")
    a("v_cmp_gt_u32 vcc, 192, v0")
    a("s_and_saveexec_b64 s[38:39], vcc")
    a("ds_write_b128 v1, v[48:51] offset:40960")
    a("s_mov_b64 exec, s[38:39]")
    a("s_waitcnt lgkmcnt(0)")
    a("s_barrier")
    a("v_and_b32 v3, 31, v0")
    a("v_bfe_u32 v4, v0, 5, 1")
    a("v_lshrrev_b32 v5, 6, v0")
    a("v_mul_u32_u24 v6, 22016, v4")
    a("v_lshl_add_u32 v6, v3, 1, v6")
    a("v_lshl_add_u32 v6, v5, 6, v6")
    a("v_and_b32 v7, 63, v0")
    a("v_lshlrev_b32 v7, 4, v7              ; l*16")
    a("s_mul_i32 s41, s37, 6144")
    a("s_mul_i32 s42, s36, 3072")
    a("s_add_u32 s41, s41, s42")
    a(f"s_add_u32 s41, s41, {WS_B1}")
    for it in range(11):
        if it == 10:
            a("v_cmp_gt_u32 vcc, 192, v0")
            a("s_and_saveexec_b64 s[38:39], vcc")
        for j in range(4):
            a(f"ds_read_u16 v{8+j}, v6 offset:{it*256 + (2*j)*2752}")
            a(f"ds_read_u16 v{60+j}, v6 offset:{it*256 + (2*j+1)*2752}")
        a(f"v_add_u32 v12, {it*4}, v5")
        a("v_mul_u32_u24 v13, 21846, v12")
        a("v_lshrrev_b32 v13, 16, v13           ; nt/3")
        a("v_mul_u32_u24 v14, 3, v13")
        a("v_sub_u32 v14, v12, v14              ; nt%3")
        a("v_mul_u32_u24 v13, 196608, v13       ; *32*6*1024")
        a("v_lshl_add_u32 v13, v14, 10, v13")
        a("v_add_u32 v13, v13, v7")
        a("s_waitcnt lgkmcnt(0)")
        for j in range(4): a(f"v_lshl_or_b32 v{8+j}, v{60+j}, 16, v{8+j}")
        a("buffer_store_dwordx4 v[8:11], v13, s[24:27], s41 offen")
        a("s_waitcnt vmcnt(0)")
    a("s_mov_b64 exec, s[38:39]")
    a("s_endpgm")
    a.label(f"{name}_wd")
    a("s_sub_u32 s37, s3, 64                ; ks16 0..85")
    srd(a, 28, 16, 17, F * D * 2)
    a("s_lshl_b32 s40, s37, 14")
    a("v_lshlrev_b32 v1, 4, v0")
    a("v_add_u32 v2, s40, v1")
    for i in range(4):
        a(f"buffer_load_dwordx4 v[{8+4*i}:{11+4*i}], v2, s[28:31], 0 offen offset:{i*4096}")
    a("s_waitcnt vmcnt(0)")
    for i in range(4):
        a(f"v_lshrrev_b32 v3, 6, v0")
        a(f"v_lshlrev_b32 v3, 4, v3")
        a(f"v_add_u32 v3, v3, v1")
        a(f"ds_write_b128 v3, v[{8+4*i}:{11+4*i}] offset:{i*4160}")
    a("s_waitcnt lgkmcnt(0)")
    a("s_barrier")
    a("v_and_b32 v3, 31, v0")
    a("v_bfe_u32 v4, v0, 5, 1")
    a("v_lshrrev_b32 v5, 6, v0")
    a("v_mul_u32_u24 v6, 8320, v4           ; 8 rows*1040")
    a("v_lshl_add_u32 v6, v3, 1, v6")
    a("v_lshl_add_u32 v6, v5, 6, v6")
    a("v_and_b32 v7, 63, v0")
    a("v_lshlrev_b32 v7, 4, v7")
    a(f"v_mul_u32_u24 v13, {KD16*1024}, v5      ; nt*86KB")
    a("v_add_u32 v7, v7, v13")
    a("s_lshl_b32 s41, s37, 10")
    a(f"s_add_u32 s41, s41, {WS_B2}")
    for it in range(4):
        for j in range(4):
            a(f"ds_read_u16 v{8+j}, v6 offset:{it*256 + (2*j)*1040}")
            a(f"ds_read_u16 v{60+j}, v6 offset:{it*256 + (2*j+1)*1040}")
        a("s_waitcnt lgkmcnt(0)")
        for j in range(4): a(f"v_lshl_or_b32 v{8+j}, v{60+j}, 16, v{8+j}")
        a(f"buffer_store_dwordx4 v[8:11], v7, s[24:27], s41 offen offset:0")
        a(f"s_add_u32 s41, s41, {4*KD16*1024}")
        a("s_waitcnt vmcnt(0)")
    a.label(f"{name}_end")
    a("s_endpgm")
    return a.text()


def gen_k2(name):
    a = Asm()
    a.label(name)
    a("s_load_dwordx2 s[10:11], s[0:1], 72")
    a("s_mov_b32 s20, 0x3f3504f3")
    a("s_mov_b32 s21, 0x3f3504f3")
    a(f"s_cmp_ge_u32 s2, {DF}")
    a(f"s_cbranch_scc1 {name}_end")
    a("s_waitcnt lgkmcnt(0)")
    srd(a, 24, 10, 11, WS_BYTES)
    a("s_lshl_b32 s3, s2, 14                ; col*16384")
    a("s_lshl_b32 s4, s2, 13")
    a(f"s_add_u32 s4, s4, {WS_WT}")
    a("v_lshlrev_b32 v1, 3, v0              ; tid*8")
    pool = Pairs(32, 160)
    cx = Cx(a, pool, 20)
    x = [pool.get() for _ in range(8)]
    for j in range(8):
        a(f"buffer_load_dwordx2 {vp(x[j])}, v1, s[24:27], s3 offen offset:{j*2048}")
    a("v_and_b32 v2, 63, v0                 ; lane")
    a("v_lshrrev_b32 v3, 6, v0              ; wave")
    a("v_lshrrev_b32 v4, 3, v2")
    a("v_and_b32 v5, 7, v2")
    a("v_lshl_add_u32 v4, v5, 3, v4         ; kl")
    a("v_lshl_add_u32 v4, v3, 7, v4         ; + 128*wave")
    a("v_lshlrev_b32 v4, 2, v4")
    for r in range(8):
        k2, k3 = r >> 2, r & 3
        a(f"buffer_load_dword v{16+r}, v4, s[24:27], s4 offen offset:{(k2*64+k3*512)*4}")
    a("v_and_b32 v5, 31, v0")
    a("v_lshrrev_b32 v6, 5, v0")
    a("v_lshlrev_b32 v7, 11, v6")
    a("v_lshl_add_u32 v7, v5, 3, v7")
    a("v_mul_u32_u24 v8, 2304, v6")
    a("v_lshl_add_u32 v8, v5, 3, v8")
    a("v_bfe_u32 v9, v0, 2, 3")
    a("v_mul_u32_u24 v10, 288, v9")
    a("v_mul_u32_u24 v11, 2304, v6")
    a("v_add_u32 v10, v10, v11")
    a("v_and_b32 v11, 3, v0")
    a("v_lshl_add_u32 v10, v11, 3, v10")
    a("v_mul_u32_u24 v12, 576, v11")
    a("v_lshl_add_u32 v13, v6, 3, v9        ; k1 + 8*k0")
    a("v_lshl_add_u32 v12, v13, 3, v12")
    a("v_mul_u32_u24 v13, 4608, v3")
    a("v_lshl_add_u32 v13, v2, 3, v13")
    a("v_cvt_f32_u32 v14, v0")
    a("v_mul_f32 v14, 0x3a000000, v14       ; tid/2048")
    a("v_cvt_f32_u32 v15, v5")
    a("v_mul_f32 v15, 0x3b800000, v15       ; m2/256")
    a("v_cvt_f32_u32 v24, v11")
    a("v_mul_f32 v24, 0x3d000000, v24       ; n0/32")
    tw1 = cx.twiddles(14, 7, 25)
    tw2 = cx.twiddles(15, 7, 25)
    tw3 = cx.twiddles(24, 7, 25)
    a("s_waitcnt vmcnt(8)")

    def twmul(y, tw, conj):
        z = [y[0]]
        for k in range(1, 8):
            z.append(cx.mul(y[k], tw[k - 1], conj=conj))
            pool.put(y[k])
        return z

    def lds_rw(z, waddr, woffs, raddr, roffs, barrier):
        for i, r in enumerate(z):
            a(f"ds_write_b64 v{waddr}, {vp(r)} offset:{woffs[i]}")
        pool.put(*z)
        a("s_waitcnt lgkmcnt(0)")
        if barrier:
            a("s_barrier")
        x = [pool.get() for _ in range(8)]
        for i, r in enumerate(x):
            a(f"ds_read_b64 {vp(r)}, v{raddr} offset:{roffs[i]}")
        a("s_waitcnt lgkmcnt(0)")
        if barrier:
            a("s_barrier")
        return x

    XAw = [k * 2048 for k in range(8)]
    XAr = [n * 256 for n in range(8)]
    XBw = [k * 288 for k in range(8)]
    XBr = [n * 32 for n in range(8)]
    XCw = [k2 * 2304 for k2 in range(8)]
    XCr = [(h * 4 + n0) * 576 for h in range(2) for n0 in range(4)]
    y = cx.fft8(x, -1)
    z = twmul(y, tw1, False)
    x = lds_rw(z, 1, XAw, 7, XAr, True)
    y = cx.fft8(x, -1)
    z = twmul(y, tw2, False)
    x = lds_rw(z, 8, XBw, 10, XBr, True)
    y = cx.fft8(x, -1)
    z = twmul(y, tw3, False)
    x = lds_rw(z, 12, XCw, 13, XCr, True)
    y = cx.fft4(x[0:4], -1) + cx.fft4(x[4:8], -1)
    a("s_waitcnt vmcnt(0)")
    z = []
    for r in range(8):
        w = pool.get()
        a(f"v_lshlrev_b32 v{w}, 16, v{16+r}")
        a(f"v_and_b32 v{w+1}, 0xffff0000, v{16+r}")
        z.append(cx.mul(y[r], w))
        pool.put(w, y[r])
    y = cx.fft4(z[0:4], +1) + cx.fft4(z[4:8], +1)
    x = lds_rw(y, 13, XCr, 12, XCw, True)
    z = twmul(x, tw3, True)
    y = cx.fft8(z, +1)
    x = lds_rw(y, 10, XBr, 8, XBw, True)
    z = twmul(x, tw2, True)
    y = cx.fft8(z, +1)
    x = lds_rw(y, 7, XAr, 1, XAw, True)
    z = twmul(x, tw1, True)
    y = cx.fft8(z, +1)
    for j in range(8):
        a(f"buffer_store_dwordx2 {vp(y[j])}, v1, s[24:27], s3 offen offset:{j*2048}")
    a.label(f"{name}_end")
    a("s_endpgm")
    return a.text(), pool.maxused


def gen_k3(name):
    a = Asm()
    a.label(name)
    a("s_load_dwordx2 s[4:5], s[0:1], 0")
    a("s_load_dwordx2 s[10:11], s[0:1], 72")
    a("s_mov_b32 s20, 0x3f3504f3")
    a("s_mov_b32 s21, 0x3f3504f3")
    a("s_cmp_ge_u32 s2, 256")
    a(f"s_cbranch_scc1 {name}_end")
    a("s_waitcnt lgkmcnt(0)")
    srd(a, 24, 10, 11, WS_BYTES)
    srd(a, 28, 4, 5, S * D * 2)
    vlane, vbase, vperm, tmp, stat = 1, 2, 4, 10, 14
    regs = (20, 21, 22, 23, 24, 25)
    a("v_and_b32 v1, 63, v0")
    a("v_lshrrev_b32 v3, 6, v0")
    a("v_mul_u32_u24 v2, 4608, v3")
    a("s_lshl_b32 s3, s2, 6")
    a("v_lshlrev_b32 v30, 4, v3")
    a("v_lshl_add_u32 v30, v1, 14, v30")
    a("v_add_u32 v30, s3, v30")
    for j in range(4):
        a(f"s_mov_b32 s6, {j*64*16384}")
        a(f"buffer_load_dwordx4 v[{100+4*j}:{103+4*j}], v30, s[24:27], s6 offen")
    a("v_lshlrev_b32 v31, 4, v3")
    a("v_add_u32 v31, s3, v31")
    a(f"s_mov_b32 s6, {256*16384}")
    a("buffer_load_dwordx4 v[116:119], v31, s[24:27], s6 offen")
    a("s_lshl_b32 s7, s2, 13")
    a("v_lshlrev_b32 v26, 11, v3")
    a("v_lshl_add_u32 v26, v1, 4, v26")
    a("v_add_u32 v26, s7, v26")
    a("buffer_load_dwordx4 v[120:123], v26, s[28:31], 0 offen")
    a("buffer_load_dwordx4 v[124:127], v26, s[28:31], 0 offen offset:1024")
    make_perm_addrs(a, vlane, vperm)
    fft512_addr_setup(a, vlane, vbase, regs, tmp)
    a("v_sub_u32 v29, 512, v1")
    a("v_lshl_add_u32 v29, v29, 3, v2")
    a("v_subrev_u32 v29, 2048, v29")
    a("s_waitcnt vmcnt(2)")
    a("v_cmp_ne_u32 vcc, 0, v1")
    a("s_nop 1")
    a("v_cndmask_b32 v101, 0, v101, vcc")
    a("v_cndmask_b32 v103, 0, v103, vcc")
    for j in range(4):
        b = 100 + 4 * j
        a(f"v_sub_f32 v32, v{b}, v{b+3}")
        a(f"v_add_f32 v33, v{b+1}, v{b+2}")
        a(f"v_add_f32 v34, v{b}, v{b+3}")
        a(f"v_sub_f32 v35, v{b+2}, v{b+1}")
        a(f"ds_write_b64 v{regs[0]}, v[32:33] offset:{j*512}")
        if j == 0:
            a("s_and_saveexec_b64 s[32:33], vcc")
            a("ds_write_b64 v29, v[34:35] offset:2048")
            a("s_mov_b64 exec, s[32:33]")
        else:
            a(f"ds_write_b64 v29, v[34:35] offset:{(4-j)*512}")
        a("s_nop 0")
    a("v_mov_b32 v32, v116")
    a("v_mov_b32 v33, v118")
    a("ds_write_b64 v2, v[32:33] offset:2048")
    a("s_waitcnt lgkmcnt(0)")
    pool = Pairs(32, 100)
    cx = Cx(a, pool, 20)
    x = [pool.get() for _ in range(8)]
    for j in range(8):
        a(f"ds_read_b64 {vp(x[j])}, v{regs[0]} offset:{j*512}")
    a("s_waitcnt lgkmcnt(0)")
    y = fft512_wave(a, cx, pool, x, +1, vlane, *regs, tmp)
    a("v_lshrrev_b32 v27, 3, v1")
    a("v_and_b32 v28, 7, v1")
    a("v_lshl_add_u32 v27, v28, 3, v27")
    a("v_lshl_add_u32 v27, v27, 3, v2")
    for n2 in range(8):
        a(f"ds_write_b64 v27, {vp(y[n2])} offset:{n2*512}")
    pool.put(*y)
    a("s_waitcnt lgkmcnt(0)")
    a("v_lshlrev_b32 v27, 6, v1")
    a("v_add_u32 v27, v27, v2")
    for i in range(4):
        a(f"ds_read_b128 v[{32+4*i}:{35+4*i}], v27 offset:{i*16}")
    a("s_waitcnt lgkmcnt(0) vmcnt(0)")
    ra = list(range(48, 56))
    rb = list(range(56, 64))
    for i in range(8):
        a(f"v_mul_f32 v{32+2*i}, 0x35000000, v{32+2*i}        ; 2^-21")
        a(f"v_mul_f32 v{33+2*i}, 0x35000000, v{33+2*i}")
        rbf_pair(a, 32 + 2 * i, 33 + 2 * i, tmp)
    for i in range(4):
        a(f"v_lshlrev_b32 v{ra[2*i]}, 16, v{120+i}")
        a(f"v_and_b32 v{ra[2*i+1]}, 0xffff0000, v{120+i}")
        a(f"v_lshlrev_b32 v{rb[2*i]}, 16, v{124+i}")
        a(f"v_and_b32 v{rb[2*i+1]}, 0xffff0000, v{124+i}")
    for i in range(8):
        a(f"v_add_f32 v{ra[i]}, v{ra[i]}, v{32+2*i}")
        a(f"v_add_f32 v{rb[i]}, v{rb[i]}, v{33+2*i}")
    for i in range(4):
        a(f"v_cvt_pk_bf16_f32 v{64+i}, v{ra[2*i]}, v{ra[2*i+1]}")
        a(f"v_cvt_pk_bf16_f32 v{68+i}, v{rb[2*i]}, v{rb[2*i+1]}")
    for i in range(4):
        a(f"v_lshlrev_b32 v{ra[2*i]}, 16, v{64+i}")
        a(f"v_and_b32 v{ra[2*i+1]}, 0xffff0000, v{64+i}")
        a(f"v_lshlrev_b32 v{rb[2*i]}, 16, v{68+i}")
        a(f"v_and_b32 v{rb[2*i+1]}, 0xffff0000, v{68+i}")
    a(f"s_mov_b32 s7, {WS_H}")
    a("buffer_store_dwordx4 v[64:67], v26, s[24:27], s7 offen")
    a("buffer_store_dwordx4 v[68:71], v26, s[24:27], s7 offen offset:1024")
    layernorm_rows(a, [ra, rb], stat, vperm, tmp)
    for i in range(4):
        a(f"v_cvt_pk_bf16_f32 v{72+i}, v{ra[2*i]}, v{ra[2*i+1]}")
        a(f"v_cvt_pk_bf16_f32 v{76+i}, v{rb[2*i]}, v{rb[2*i+1]}")
    a("s_lshr_b32 s7, s2, 2")
    a("s_lshl_b32 s7, s7, 15")
    a("s_and_b32 s8, s2, 3")
    a("s_lshl_b32 s8, s8, 7")
    a("s_add_u32 s7, s7, s8")
    a(f"s_add_u32 s7, s7, {WS_HN}")
    a("v_lshrrev_b32 v27, 1, v1")
    a("v_lshlrev_b32 v27, 10, v27")
    a("v_and_b32 v28, 1, v1")
    a("v_lshl_add_u32 v27, v28, 9, v27")
    a("v_lshl_add_u32 v27, v3, 5, v27")
    a("buffer_store_dwordx4 v[72:75], v27, s[24:27], s7 offen")
    a("buffer_store_dwordx4 v[76:79], v27, s[24:27], s7 offen offset:16")
    a.label(f"{name}_end")
    a("s_endpgm")
    return a.text()
```

```python
S, D, DF, F = 2048, 512, 257, 1376
KD16 = 86
WS_T = 0
WS_WT = 0x410000
WS_H = 0x620000
WS_HN = 0x820000
WS_G = 0xA20000
WS_B1 = 0xFA0000
WS_B2 = 0x1270000
WS_BYTES = 0x1400000
K1_FFT_WGS = 256
K1_W_WGS = 64
K1_WGS = 256 + 64 + 64 + 86
```

```python
import sys
sys.path.insert(0,'gen')
from fftk import *; from gemmk import *
N="sequential_preLN__spectral_gfnet__geglu_ffn__prompt"
ref=open(f"cdna_kernels/{N}.s.ref").read()
hdr="".join(l+"\n" for l in ref.split("\n") if l.startswith(";") and "@launch" not in l)
ks=[("k1_kernel",gen_k1,K1_WGS,256,45056,128),("k2_kernel",lambda n:gen_k2(n)[0],257,256,18432,160),
    ("k3_kernel",gen_k3,256,256,18432,128),("k4_kernel",gen_k4,240,256,81920,160),("k5_kernel",gen_k5,256,128,0,96)]
out=hdr
for n,g,gr,bl,lds,v in ks: out+=f"; @launch kernel={n} grid=({gr},1,1) block=({bl},1,1) lds={lds}\n"
out+='.amdgcn_target "amdgcn-amd-amdhsa--gfx950"\n.text\n'
for n,g,gr,bl,lds,v in ks:
    out+=f".globl {n}\n.p2align 8\n.type {n},@function\n"+g(n)
out+='.section .rodata,"a"\n'
for n,g,gr,bl,lds,v in ks:
    out+=f""".p2align 6
.amdhsa_kernel {n}
  .amdhsa_next_free_vgpr {v}
  .amdhsa_next_free_sgpr 102
  .amdhsa_accum_offset {v}
  .amdhsa_group_segment_fixed_size 0
  .amdhsa_kernarg_size 80
  .amdhsa_user_sgpr_count 2
  .amdhsa_user_sgpr_kernarg_segment_ptr 1
  .amdhsa_system_sgpr_workgroup_id_x 1
.end_amdhsa_kernel
"""
open(f"cdna_kernels/{N}.s","w").write(out)
```
